```python
import torch

def _softmax(x, axis=-1):
    return torch.softmax(x, dim=axis)
def _gelu(x):
    return torch.nn.functional.gelu(x, approximate="tanh")
def _silu(x):
    return torch.nn.functional.silu(x)
def _sigmoid(x):
    return torch.sigmoid(x)
def _layernorm(x, axis=-1, eps=1e-5):
    m = x.mean(dim=axis, keepdim=True)
    v = x.var(dim=axis, keepdim=True, unbiased=False)
    return (x - m) / torch.sqrt(v + eps)
def _scatter_add(tgt, idx, src, axis=0):
    return tgt.clone().index_add_(axis, idx, src)
def _segment_sum(src, seg, n):
    out = torch.zeros((n,) + src.shape[1:], dtype=src.dtype)
    return out.index_add_(0, seg, src)
def _pad(x, pw):
    flat = tuple(v for pair in reversed(pw) for v in pair)
    return torch.nn.functional.pad(x, flat)

kernel_name = 'recurrent_scan__mha_block_cached__glu_gated_swiglu__decode'

def setup_inputs():

    _w = (lambda a: (lambda t: t.to(torch.bfloat16) if t.is_floating_point() else t)(torch.as_tensor(a)))
    def _A_setup():
        B, Sq, D = 8, 1, 576
        H, Sk, Dh = 32, 4096, 128
        return {
            "x": _w((lambda *s: torch.randn(*s, dtype=torch.bfloat16) * 0.05)(B, Sq, D)),
            "k_cache": _w((lambda *s: torch.randn(*s, dtype=torch.bfloat16) * 3.2)(B, H, Sk, Dh)),
            "v_cache": _w((lambda *s: torch.randn(*s, dtype=torch.bfloat16) * 3.2)(B, H, Sk, Dh)),
            "wq": _w((lambda *s: torch.randn(*s, dtype=torch.bfloat16) * 3.2)(D, H * Dh) * (D ** -0.5)),
            "wo": _w((lambda *s: torch.randn(*s, dtype=torch.bfloat16) * 3.2)(H * Dh, D) * ((H * Dh) ** -0.5)),
        }
    _A_in = _A_setup()

    def _B_setup():
        B, S, D, F = 8, 1, 576, 4608
        return {
            "x": _w((lambda *s: torch.randn(*s, dtype=torch.bfloat16) * 0.05)(B, S, D)),
            "w1": _w((lambda *s: torch.randn(*s, dtype=torch.bfloat16) * 0.4)(D, F) * (2.0 / D) ** 0.5),
            "w3": _w((lambda *s: torch.randn(*s, dtype=torch.bfloat16) * 0.4)(D, F) * (2.0 / D) ** 0.5),
            "w2": _w((lambda *s: torch.randn(*s, dtype=torch.bfloat16) * 0.4)(F, D) * (2.0 / F) ** 0.5),
        }
    _B_in = _B_setup()

    return {
        "A_x": _A_in["x"],
        "A_k_cache": _A_in["k_cache"],
        "A_v_cache": _A_in["v_cache"],
        "A_wq": _A_in["wq"],
        "A_wo": _A_in["wo"],
        "B_x": _B_in["x"],
        "B_w1": _B_in["w1"],
        "B_w3": _B_in["w3"],
        "B_w2": _B_in["w2"],
    }

def reference(A_x, A_k_cache, A_v_cache, A_wq, A_wo, B_x, B_w1, B_w3, B_w2):
    def _A_ref(x, k_cache, v_cache, wq, wo):
        B, Sq, D = x.shape
        H, Dh = 32, 128
        q = (lambda x, *d: x.permute(*d))((x @ wq).reshape(B, Sq, H, Dh), 0, 2, 1, 3)
        scores = torch.einsum("bhqd,bhkd->bhqk", q, k_cache) * (Dh ** -0.5)
        p = _softmax(scores, axis=-1)
        o = torch.einsum("bhqk,bhkd->bhqd", p, v_cache)
        return (lambda x, *d: x.permute(*d))(o, 0, 2, 1, 3).reshape(B, Sq, H * Dh) @ wo

    def _B_ref(x, w1, w3, w2):
        gate = torch.einsum("bsd,df->bsf", x, w1)
        up = torch.einsum("bsd,df->bsf", x, w3)
        h = _silu(gate) * up
        out = torch.einsum("bsf,fd->bsd", h, w2)
        return out

    x = A_x
    xn = _layernorm(x, axis=-1)
    s = _A_ref(xn, A_k_cache, A_v_cache, A_wq, A_wo)
    g = _silu(_B_ref(xn, B_w1, B_w3, B_w2))
    return x + s * g
```

```python
import re

def regs_of(tok):
    tok = tok.strip()
    neg = tok.startswith('-')
    if neg: tok = tok[1:]
    m = re.fullmatch(r'abs\((.*)\)', tok)
    if m: tok = m.group(1)
    m = re.fullmatch(r'\|(.*)\|', tok)
    if m: tok = m.group(1)
    m = re.fullmatch(r'([vsa])(\d+)', tok)
    if m: return {(m.group(1), int(m.group(2)))}
    m = re.fullmatch(r'([vsa])\[(\d+):(\d+)\]', tok)
    if m: return {(m.group(1), k) for k in range(int(m.group(2)), int(m.group(3)) + 1)}
    if tok == 'vcc': return {('s', 106), ('s', 107)}
    if tok == 'vcc_lo': return {('s', 106)}
    if tok == 'vcc_hi': return {('s', 107)}
    if tok == 'exec': return {('s', 126), ('s', 127)}
    if tok == 'm0': return {('s', 124)}
    return set()

TRANS = ('v_exp_f32', 'v_log_f32', 'v_rcp_f32', 'v_rsq_f32', 'v_sqrt_f32', 'v_sin_f32', 'v_cos_f32')

class Ins:
    __slots__ = ('op', 'dst', 'src', 'kind', 'ws', 'srcC', 'srcAB', 'dpp', 'stdata')

def split_ops(s):
    out = []; depth = 0; cur = ''
    for ch in s:
        if ch in '[(': depth += 1
        if ch in '])': depth -= 1
        if ch == ',' and depth == 0:
            out.append(cur.strip()); cur = ''
        else:
            cur += ch
    if cur.strip(): out.append(cur.strip())
    return out

def parse(line):
    line = line.split(';')[0].strip()
    parts = line.split(None, 1)
    op = parts[0]
    rest = parts[1] if len(parts) > 1 else ''
    ops = split_ops(rest)
    toks = []
    mods = ''
    for k, o in enumerate(ops):
        sp = o.split()
        if not sp: continue
        toks.append(sp[0])
        if len(sp) > 1: mods += ' ' + ' '.join(sp[1:])
    i = Ins(); i.op = op; i.dst = set(); i.src = set(); i.ws = 1; i.srcC = set(); i.srcAB = set(); i.stdata = set()
    i.dpp = ('_dpp' in op) or ('row_' in mods) or ('quad_perm' in mods)
    base = re.sub(r'_(e32|e64|dpp|sdwa)$', '', op)
    if op == 's_nop':
        i.kind = 'nop'; i.ws = int(toks[0], 0) + 1; return i
    if op.startswith('v_mfma'):
        i.kind = 'mfma'
        i.dst = regs_of(toks[0]); i.srcAB = regs_of(toks[1]) | regs_of(toks[2]); i.srcC = regs_of(toks[3])
        i.src = i.srcAB | i.srcC; return i
    if op.startswith('v_dot'):
        i.kind = 'dot'
        i.dst = regs_of(toks[0]); i.srcAB = regs_of(toks[1]) | regs_of(toks[2])
        i.srcC = regs_of(toks[3]) if len(toks) > 3 else set(i.dst)
        i.src = i.srcAB | i.srcC; return i
    if op.startswith('v_permlane'):
        i.kind = 'permlane'; i.dst = regs_of(toks[0]) | regs_of(toks[1]); i.src = set(i.dst); return i
    if op.startswith('v_readlane') or op.startswith('v_readfirstlane'):
        i.kind = 'readlane'; i.dst = regs_of(toks[0])
        for t in toks[1:]: i.src |= regs_of(t)
        return i
    if op.startswith('v_cmp'):
        i.kind = 'valu'; i.dst = regs_of(toks[0])
        for t in toks[1:]: i.src |= regs_of(t)
        return i
    if op.startswith('v_'):
        i.kind = 'trans' if base in TRANS else 'valu'
        i.dst = regs_of(toks[0])
        srcs = toks[1:]
        if base in ('v_add_co_u32', 'v_sub_co_u32', 'v_addc_co_u32', 'v_subb_co_u32', 'v_div_scale_f32'):
            i.dst |= regs_of(toks[1]); srcs = toks[2:]
        for t in srcs: i.src |= regs_of(t)
        if base in ('v_fmac_f32', 'v_pk_fmac_f16') or i.dpp: i.src |= {r for r in i.dst if r[0] == 'v'} if base == 'v_fmac_f32' else set()
        if base == 'v_cndmask_b32' and len(toks) == 3: i.src |= regs_of('vcc')
        return i
    if op.startswith('buffer_') or op.startswith('global_') or op.startswith('flat_'):
        i.kind = 'vmem'
        allr = set()
        for t in toks: allr |= regs_of(t)
        if 'load' in op and ' lds' not in (mods + ' ') and '_lds_' not in op:
            i.dst = regs_of(toks[0])
            for t in toks[1:]: i.src |= regs_of(t)
        else:
            i.src = allr
            if ' lds' in mods or '_lds_' in op: i.src |= regs_of('m0'); i.kind = 'vmem_lds'
            if 'store_dwordx4' in op or 'store_dwordx3' in op:
                i.stdata = regs_of(toks[0]) if op.startswith('buffer_') else regs_of(toks[1])
            if 'atomic' in op and ' sc0' in mods:
                i.dst = regs_of(toks[0])
        return i
    if op.startswith('ds_'):
        i.kind = 'ds'
        if op.startswith('ds_read') or op.startswith('ds_bpermute') or op.startswith('ds_swizzle') or op.startswith('ds_permute'):
            i.dst = regs_of(toks[0])
            for t in toks[1:]: i.src |= regs_of(t)
        else:
            for t in toks: i.src |= regs_of(t)
        return i
    if op.startswith('s_'):
        i.kind = 'salu'
        if op.startswith(('s_cmp', 's_cbranch', 's_branch', 's_waitcnt', 's_barrier', 's_endpgm', 's_sleep', 's_setprio', 's_bitcmp')):
            for t in toks: i.src |= regs_of(t)
        else:
            if toks: i.dst = regs_of(toks[0])
            for t in toks[1:]: i.src |= regs_of(t)
            if 'saveexec' in op: i.dst |= regs_of('exec')
        return i
    raise ValueError('cannot parse: ' + line)

VAL = ('valu', 'trans', 'dot', 'permlane', 'readlane')

def need(p, c):
    n = 0
    pv = {r for r in p.dst if r[0] in 'va'}; ps = {r for r in p.dst if r[0] == 's'}
    cv_r = {r for r in c.src if r[0] in 'va'}; cs_r = {r for r in c.src if r[0] == 's'}
    cv_w = {r for r in c.dst if r[0] in 'va'}
    c_valu = c.kind in VAL
    if p.kind in VAL:
        if pv & cv_r:
            if c.dpp and c_valu: n = max(n, 2)
            if c.kind == 'mfma': n = max(n, 2)
            if c.kind == 'permlane': n = max(n, 2)
            if c.kind == 'readlane': n = max(n, 1)
            if p.kind == 'trans' and c.kind != 'trans' and (c_valu or c.kind == 'mfma'): n = max(n, 1)
        if p.kind == 'dot':
            if c.kind == 'dot' and c.op == p.op:
                if pv & c.srcAB: n = max(n, 3)
            elif (pv & (cv_r | cv_w)): n = max(n, 3)
        if ps:
            if (ps & cs_r):
                if c_valu: n = max(n, 4 if c.kind == 'readlane' else 2)
                if c.kind in ('vmem', 'vmem_lds'): n = max(n, 5)
                if c.kind == 'salu': n = max(n, 1)
            if ps & regs_of('exec'):
                if c.dpp: n = max(n, 5)
                if c.kind in ('mfma', 'readlane', 'permlane'): n = max(n, 4)
    if p.kind == 'mfma':
        if c.kind == 'mfma':
            if pv & c.srcAB: n = max(n, 8)
            if pv & c.srcC and pv != c.srcC: n = max(n, 6)
        elif c_valu or c.kind in ('vmem', 'ds', 'vmem_lds'):
            if pv & (cv_r | cv_w): n = max(n, 8)
        if c_valu and (p.srcC & cv_w): n = max(n, 3)
    if p.kind == 'salu' and (('s', 124) in p.dst) and c.kind == 'vmem_lds': n = max(n, 1)
    if p.stdata and (p.stdata & cv_w): n = max(n, 2)
    return n

class Asm:
    def __init__(self):
        self.lines = []; self.hist = []; self.vm = []; self.nops = 0
    def raw(self, s): self.lines.append(s)
    def comment(self, s): self.lines.append('    ; ' + s)
    def label(self, name):
        self.fence(); self.lines.append(name + ':'); self.hist = []
    def fence(self):
        dist = 0; worst = 0
        for p in reversed(self.hist):
            w = 0
            if p.kind == 'mfma': w = 8
            elif p.kind in VAL: w = 5 if any(r[0] == 's' for r in p.dst) else 3
            elif p.stdata: w = 2
            elif p.kind == 'salu' and ('s', 124) in p.dst: w = 1
            worst = max(worst, w - dist)
            dist += p.ws
            if dist >= 8: break
        if worst > 0: self._nop(worst)
        self.hist = []
    def _nop(self, n):
        self.nops += 1
        self.lines.append(f'    s_nop {n-1}')
        i = parse(f's_nop {n-1}'); self.hist.append(i)
    def __call__(self, s, tag=None):
        c = parse(s)
        dist = 0; worst = 0
        for p in reversed(self.hist):
            worst = max(worst, need(p, c) - dist)
            dist += p.ws
            if dist >= 12: break
        if worst > 0: self._nop(worst)
        if c.op.startswith(('s_cbranch', 's_branch')):
            self.fence()
        self.lines.append('    ' + s)
        self.hist.append(c)
        if len(self.hist) > 32: self.hist = self.hist[-16:]
        if c.kind in ('vmem', 'vmem_lds'):
            self.vm.append(tag)
    def wait_vm(self, tag):
        if tag not in self.vm: return
        idx = len(self.vm) - 1 - self.vm[::-1].index(tag)
        n = len(self.vm) - 1 - idx
        assert n <= 63, n
        self(f's_waitcnt vmcnt({n})')
        self.vm = self.vm[idx + 1:]
    def wait_vm_all(self):
        self('s_waitcnt vmcnt(0)'); self.vm = []
    def text(self): return '\n'.join(self.lines) + '\n'
```

```python
import sys, argparse
sys.path.insert(0, 'gen')
from asmlib import Asm

KNAME = "recurrent_scan__mha_block_cached__glu_gated_swiglu__decode_kernel"

HDR = open('cdna_kernels/' + KNAME[:-7] + '.s.ref').read().split('; Override launch')[0]

WS_ACCS = 0
WS_ACCF = 18432
WS_CNT = 38912
WS_FCNT = 40960
WS_ZERO = 43008
WS_G = 43008
WS_SIZE = 65536
L_WO = 0
L_QP = 147456
L_ML = L_QP + 2048
L_X = L_ML + 64
L_G = L_X + 4608
L_TOTAL = L_G + 9216
LOG2E = 0x3fb8aa3b
SCALE = 0x3db504f3
EPS = 0x3727c5ac
INV576 = 0x3ae38e39

def bitrev4(j): return ((j & 1) << 3) | ((j & 2) << 1) | ((j & 4) >> 1) | ((j & 8) >> 3)

def gen(D=6, chunk=1, kv_fl='nt', wq_fl='', wo_fl='', w13_fl='', w2_fl='nt', stamps=False, PRE=16, h_ln_first=True,
        wo_inflight=8, VPRE=16, h_late=False, k_first=False, stamp_wave=0, xwait=False, ln_at=99):
    a = Asm()
    fl = lambda f: (' ' + f) if f else ''
    sX, sK, sV, sWQ, sWO, sW1, sW3, sW2, sOUT, sDBG, sWS = 4, 6, 8, 10, 12, 16, 18, 20, 22, 24, 26
    sWAVE, sB, sH, sBH = 28, 29, 30, 31
    rK, rV, rX, rW, rWO, rWS, rOUT, rDBG = 32, 36, 40, 44, 48, 52, 56, 60
    sT0, sT1, sOFF, sBASE, sCNT = 64, 65, 66, 67, 68
    sM1, sM0 = 70, 72
    sSEL0, sSEL1 = 74, 75
    sC0, sC1 = 76, 78
    sF0, sF1 = 80, 81
    sMASK = 82
    sTILE = 84
    sST = 86
    def srd(r, lo, size, add=None):
        if add is None:
            a(f's_mov_b32 s{r}, s{lo}'); a(f's_mov_b32 s{r+1}, s{lo+1}')
        else:
            a(f's_add_u32 s{r}, s{lo}, {add}'); a(f's_addc_u32 s{r+1}, s{lo+1}, 0')
        a(f's_mov_b32 s{r+2}, {size}'); a(f's_mov_b32 s{r+3}, 0x20000')
    def stamp(name):
        if stamps and name in stamps:
            k = stamps.index(name)
            a(f's_memrealtime s[{sST+2*k}:{sST+2*k+1}]')
    def stamp_store(slot, lbl):
        a('s_waitcnt lgkmcnt(0)')
        a(f's_add_u32 s{sC0}, s{sWS}, {0x20000000 + slot*16384}'); a(f's_addc_u32 s{sC0+1}, s{sWS+1}, 0')
        a(f's_lshl_b32 s{sT1}, s2, 6'); a(f'v_mov_b32 v7, s{sT1}')
        for q in range(4):
            for k in range(4): a(f'v_mov_b32 v{8+k}, s{sST+4*q+k}')
            a(f'global_store_dwordx4 v7, v[8:11], s[{sC0}:{sC0+1}] offset:{16*q}')
    def S(r): return f's[{r}:{r+3}]'
    def V4(r): return f'v[{r}:{r+3}]'
    def V2(r): return f'v[{r}:{r+1}]'
    def wave_reduce(op, v, sdst):
        for n in (8, 4, 2, 1):
            a(f'{op}_dpp v{v}, v{v}, v{v} row_ror:{n} row_mask:0xf bank_mask:0xf')
        a(f'{op}_dpp v{v}, v{v}, v{v} row_bcast:15 row_mask:0xa bank_mask:0xf')
        a(f'{op}_dpp v{v}, v{v}, v{v} row_bcast:31 row_mask:0xc bank_mask:0xf')
        a(f'v_readlane_b32 s{sdst}, v{v}, 63')
    def bf16r(d, s):
        a(f'v_cvt_pk_bf16_f32 v{d}, v{s}, v{s}')
        a(f'v_and_b32 v{d}, 0xffff0000, v{d}')

    a.raw(HDR.rstrip('\n'))
    a.raw(f'; @launch grid=(256,1,1) block=(320,1,1) lds={L_TOTAL}')
    a.raw('.amdgcn_target "amdgcn-amd-amdhsa--gfx950"')
    a.raw('.text'); a.raw(f'.globl {KNAME}'); a.raw('.p2align 8'); a.raw(f'.type {KNAME},@function'); a.raw(f'{KNAME}:')
    a('s_cmp_ge_u32 s2, 256'); a('s_cbranch_scc1 L_end')
    stamp('start')
    a('s_load_dwordx16 s[4:19], s[0:1], 0')
    a('s_load_dwordx8 s[20:27], s[0:1], 64')
    vLANE, vG, vI = 1, 2, 3
    a('v_lshrrev_b32 v4, 6, v0')
    a(f'v_and_b32 v{vLANE}, 63, v0')
    a(f'v_readfirstlane_b32 s{sWAVE}, v4')
    a(f'v_lshrrev_b32 v{vG}, 4, v{vLANE}')
    a(f'v_and_b32 v{vI}, 15, v{vLANE}')
    a(f's_lshr_b32 s{sB}, s2, 5')
    a(f's_and_b32 s{sT0}, s2, 7'); a(f's_lshl_b32 s{sT0}, s{sT0}, 2')
    a(f's_bfe_u32 s{sT1}, s2, 0x20003')
    a(f's_add_u32 s{sH}, s{sT0}, s{sT1}')
    a(f's_lshl_b32 s{sBH}, s{sB}, 5'); a(f's_add_u32 s{sBH}, s{sBH}, s{sH}')
    a(f's_cmp_eq_u32 s{sWAVE}, 4'); a('s_cbranch_scc1 L_helper')

    a('s_setprio 2')
    vM = 4
    vAP = 8
    vD = 12
    vQ = 16
    vKO = 20
    vPE0, vPE1, vPO, vT20, vT21, vT30, vT31, vU0, vU1, vMAX = 21, 22, 23, 24, 25, 26, 27, 28, 29, 30
    vTMP = 31
    vS = 32
    vRING = 48
    vW = 112
    vXA, vXB = 32, 36
    vXV = 40
    vXD = 43
    vWO_ = 46
    a(f'v_lshlrev_b32 v{vKO}, 4, v{vLANE}')
    a(f's_mul_i32 s{sT0}, s{sWAVE}, 144')
    a(f'v_lshl_add_u32 v{vTMP}, v{vI}, 2, v{vG}')
    a(f'v_add_u32 v{vTMP}, s{sT0}, v{vTMP}')
    a(f'v_lshlrev_b32 v{vTMP}, 1, v{vTMP}')
    a(f'v_add_u32 v{vWO_}, s{sT0}, v{vG}')
    a(f'v_lshlrev_b32 v{vWO_}, 13, v{vWO_}')
    a(f'v_lshl_add_u32 v{vWO_}, v{vI}, 4, v{vWO_}')
    a(f's_mul_i32 s{sT1}, s{sB}, 1152')
    a(f's_lshl_b32 s{sOFF}, s{sH}, 8')
    a(f's_lshl_b32 s{sBASE}, s{sBH}, 20')
    a('s_waitcnt lgkmcnt(0)')
    stamp('karg')
    srd(rX, sX, 1152, f's{sT1}')
    xa = f'buffer_load_dwordx4 {V4(vXA)}, v{vKO}, {S(rX)}, 0 offen'
    a(xa, 'xa')
    a(f'buffer_load_dwordx4 {V4(vXB)}, v{vKO}, {S(rX)}, 0 offen offset:1024', 'xb')
    for r in range(3):
        a(f'buffer_load_ushort v{vXV+r}, v{vTMP}, {S(rX)}, 0 offen offset:{128*r}', f'xv{r}')
    if xwait:
        a.wait_vm('xv2'); stamp('x0')
    srd(rW, sWQ, 576 * 8192 - 31 * 256, f's{sOFF}')
    for j in range(36):
        a(f's_mov_b32 s{sOFF}, {j*32768}')
        a(f'buffer_load_dwordx4 {V4(vW+4*j)}, v{vWO_}, {S(rW)}, s{sOFF} offen{fl(wq_fl)}', f'wq{j}')
    stamp('wqi')
    srd(rK, sK, 1 << 20, f's{sBASE}')
    srd(rV, sV, 1 << 20, f's{sBASE}')
    a(f's_lshl_b32 s{sT0}, s{sWAVE}, {10 + chunk.bit_length() - 1}')
    vKV = 47
    a(f'v_add_u32 v{vKV}, s{sT0}, v{vKO}')
    def koff(n): return (n // chunk) * 4 * chunk * 1024 + (n % chunk) * 1024
    ITER_BYTES = 65536
    def kv_load(srd_, n, tag, rel, vo):
        o = koff(n); imm = o % 4096 if chunk > 1 else 0; o -= imm
        if rel: a(f's_add_u32 s{sOFF}, s{sBASE}, {o}')
        else: a(f's_mov_b32 s{sOFF}, {o}')
        slot = vRING + 4 * (n % 16)
        a(f'buffer_load_dwordx4 {V4(slot)}, v{vo}, {S(srd_)}, s{sOFF} offen' + (f' offset:{imm}' if imm else '') + fl(kv_fl), tag)
    for n in range(PRE):
        kv_load(rK, n, f'k{n}', False, vKV)
    stamp('ki')
    a(f'v_and_b32 v{vU0}, 1, v{vLANE}')
    a(f'v_lshlrev_b32 v{vU0}, 4, v{vU0}')
    a(f'v_mov_b32 v{vU1}, 0xffff')
    a(f'v_lshlrev_b32 v{vU1}, v{vU0}, v{vU1}')
    a(f'v_bfe_u32 v{vU0}, v{vLANE}, 1, 2')
    for r in range(4):
        a(f'v_cmp_eq_u32 vcc, {r}, v{vU0}')
        a(f'v_cndmask_b32 v{vM+r}, 0, v{vU1}, vcc')
    a(f's_mov_b32 s{sM1}, 0xcccccccc'); a(f's_mov_b32 s{sM1+1}, 0xcccccccc')
    a(f's_mov_b32 s{sM0}, 0xaaaaaaaa'); a(f's_mov_b32 s{sM0+1}, 0xaaaaaaaa')
    un = [8, 9, 10, 11, 12, 13, 14, 15, 16, 17, 18, 19, 21, 22, 23, 24]
    a.wait_vm('xb')
    stamp('x')
    for k in range(8):
        src = vXA + k
        a(f'v_lshlrev_b32 v{un[2*k]}, 16, v{src}')
        a(f'v_and_b32 v{un[2*k+1]}, 0xffff0000, v{src}')
    acc, acc2 = 25, 26
    a(f'v_add_f32 v{acc}, v{un[0]}, v{un[1]}')
    a(f'v_add_f32 v{acc2}, v{un[2]}, v{un[3]}')
    for k in range(4, 16, 2):
        a(f'v_add_f32 v{acc}, v{acc}, v{un[k]}')
        a(f'v_add_f32 v{acc2}, v{acc2}, v{un[k+1]}')
    a(f'v_add_f32 v{acc}, v{acc}, v{acc2}')
    wave_reduce('v_add_f32', acc, sF0)
    vMEAN = 27
    a(f'v_mov_b32 v{vMEAN}, {INV576:#x}')
    a(f'v_mul_f32 v{vMEAN}, s{sF0}, v{vMEAN}')
    for k in range(16):
        a(f'v_sub_f32 v{un[k]}, v{un[k]}, v{vMEAN}')
    a(f'v_mul_f32 v{acc}, v{un[0]}, v{un[0]}')
    for k in range(1, 8):
        a(f'v_fmac_f32 v{acc}, v{un[k]}, v{un[k]}')
    a('s_mov_b64 exec, 0xff')
    for k in range(8, 16):
        a(f'v_fmac_f32 v{acc}, v{un[k]}, v{un[k]}')
    a('s_mov_b64 exec, -1')
    wave_reduce('v_add_f32', acc, sF1)
    def ln_finish(vVAR, vMEAN, vSD, vRC):
        bf16r(vMEAN, vMEAN)
        bf16r(vVAR, vVAR)
        a(f'v_add_f32 v{vVAR}, {EPS:#x}, v{vVAR}')
        bf16r(vVAR, vVAR)
        a(f'v_sqrt_f32 v{vSD}, v{vVAR}')
        bf16r(vSD, vSD)
        a(f'v_rcp_f32 v{vRC}, v{vSD}')
    vVAR, vSD, vRC = 28, 29, 30
    a(f'v_mov_b32 v{vVAR}, {INV576:#x}')
    a(f'v_mul_f32 v{vVAR}, s{sF1}, v{vVAR}')
    ln_finish(vVAR, vMEAN, vSD, vRC)
    def ln_elem(x, t):
        a(f'v_sub_f32 v{x}, v{x}, v{vMEAN_}')
        bf16r(x, x)
        a(f'v_mul_f32 v{t}, v{x}, v{vRC_}')
        a(f'v_fma_f32 v{x}, -v{t}, v{vSD_}, v{x}')
        a(f'v_fma_f32 v{x}, v{x}, v{vRC_}, v{t}')
    vMEAN_, vSD_, vRC_ = vMEAN, vSD, vRC
    a.wait_vm('xv2')
    for r in range(3):
        a(f'v_lshlrev_b32 v{vXV+r}, 16, v{vXV+r}')
        ln_elem(vXV + r, 8 + r)
        a(f'v_cvt_pk_bf16_f32 v{vXD+r}, v{vXV+r}, v{vXV+r}')
    stamp('ln')
    for j in range(36):
        for r in range(4):
            a(f'v_and_b32_dpp v{vAP+r}, v{vXD + (j >> 4)}, v{vM+r} row_newbcast:{j & 15} row_mask:0xf bank_mask:0xf')
        a.wait_vm(f'wq{j}')
        a(f'v_mfma_f32_16x16x32_bf16 {V4(vD)}, {V4(vAP)}, {V4(vW+4*j)}, ' + (V4(vD) if j else '0'))
    stamp('qmfma')
    vLA = vTMP
    a(f'v_and_b32 v{vU0}, 1, v{vG}')
    a(f'v_lshlrev_b32 v{vU0}, 4, v{vU0}')
    a(f'v_lshl_add_u32 v{vLA}, v{vI}, 5, v{vU0}')
    a(f's_lshl_b32 s{sT0}, s{sWAVE}, 9')
    a(f's_add_u32 s{sT0}, s{sT0}, {L_QP}')
    a(f'v_add_u32 v{vLA}, s{sT0}, v{vLA}')
    a(f'ds_write_b128 v{vLA}, {V4(vD)}')
    a(f'v_lshlrev_b32 v{vU0}, 5, v{vI}')
    a(f'v_add_u32 v{vU0}, {L_QP}, v{vU0}')
    a('s_waitcnt lgkmcnt(0)')
    a('s_barrier')
    for w in range(4):
        a(f'ds_read_b128 {V4(vW+8*w)}, v{vU0} offset:{512*w}')
        a(f'ds_read_b128 {V4(vW+8*w+4)}, v{vU0} offset:{512*w+16}')
    a(f'v_mov_b32 v{vKO}, v{vKV}')
    a(f'v_mov_b32 v{vMAX}, 0xff800000')
    a('s_waitcnt lgkmcnt(0)')
    for k in range(8):
        a(f'v_add_f32 v{vW+k}, v{vW+k}, v{vW+8+k}')
        a(f'v_add_f32 v{vW+16+k}, v{vW+16+k}, v{vW+24+k}')
    for k in range(8):
        a(f'v_add_f32 v{vW+k}, v{vW+k}, v{vW+16+k}')
    for c in range(4):
        a(f'v_cvt_pk_bf16_f32 v{vQ+c}, v{vW+2*c}, v{vW+2*c+1}')
    stamp('q')

    def k_consume(j):
        slot = vRING + 4 * j
        P = (vPE0, vPE1)[(j >> 1) & 1] if j % 2 == 0 else vPO
        for c in range(4):
            a(f'v_dot2_f32_bf16 v{P}, v{slot+c}, v{vQ+c}, ' + (f'v{P}' if c else '0'))
    def k_reduce(j):
        if j % 2 == 1:
            PE = (vPE0, vPE1)[(j >> 1) & 1]
            a(f'v_add_f32_dpp v{PE}, v{PE}, v{PE} row_ror:8 row_mask:0xf bank_mask:0x3')
            a(f'v_add_f32_dpp v{PE}, v{vPO}, v{vPO} row_ror:8 row_mask:0xf bank_mask:0xc')
        if j % 4 == 3:
            T = (vT20, vT21)[(j >> 2) & 1]
            a(f'v_add_f32_dpp v{T}, v{vPE0}, v{vPE0} row_ror:12 row_mask:0xf bank_mask:0x5')
            a(f'v_add_f32_dpp v{T}, v{vPE1}, v{vPE1} row_ror:4 row_mask:0xf bank_mask:0xa')
        if j % 8 == 7:
            T = (vT30, vT31)[(j >> 3) & 1]
            a(f'v_add_f32_dpp v{vU0}, v{vT20}, v{vT20} quad_perm:[2,3,0,1] row_mask:0xf bank_mask:0xf')
            a(f'v_add_f32_dpp v{vU1}, v{vT21}, v{vT21} quad_perm:[2,3,0,1] row_mask:0xf bank_mask:0xf')
            a(f'v_cndmask_b32 v{T}, v{vU0}, v{vU1}, s[{sM1}:{sM1+1}]')
        if j == 15:
            a(f'v_add_f32_dpp v{vU0}, v{vT30}, v{vT30} quad_perm:[1,0,3,2] row_mask:0xf bank_mask:0xf')
            a(f'v_add_f32_dpp v{vU1}, v{vT31}, v{vT31} quad_perm:[1,0,3,2] row_mask:0xf bank_mask:0xf')
            a(f'v_cndmask_b32 v{vU0}, v{vU0}, v{vU1}, s[{sM0}:{sM0+1}]')
            for k in range(15):
                a(f'v_mov_b32 v{vS+k}, v{vS+k+1}')
            bf16r(vU0, vU0)
            a(f'v_mul_f32 v{vU0}, {SCALE:#x}, v{vU0}')
            bf16r(vS + 15, vU0)
            a(f'v_max_f32 v{vMAX}, v{vMAX}, v{vS+15}')
    issued = PRE
    for j in range(16):
        a.wait_vm(f'k{j}')
        k_consume(j)
        while issued <= j + D:
            kv_load(rK, issued, f'k{issued}', False, vKO); issued += 1
        k_reduce(j)
    assert a.vm == [f'k{n}' for n in range(16, 16 + D)], a.vm
    a(f's_mov_b32 s{sBASE}, {ITER_BYTES}')
    a(f's_mov_b32 s{sCNT}, 14')
    a.label('L_kloop')
    for j in range(16):
        a.wait_vm(f'k{16+j}')
        k_consume(j)
        kv_load(rK, j + D, f'k{16+j+D}', True, vKO)
        k_reduce(j)
    assert a.vm == [f'k{n}' for n in range(32, 32 + D)]
    a(f's_add_u32 s{sBASE}, s{sBASE}, {ITER_BYTES}')
    a(f's_sub_u32 s{sCNT}, s{sCNT}, 1'); a(f's_cmp_lg_u32 s{sCNT}, 0'); a('s_cbranch_scc1 L_kloop')
    a.vm = [f'k{n}' for n in range(240, 240 + D)]
    for j in range(16):
        a.wait_vm(f'k{240+j}')
        k_consume(j)
        if j + D < 16: kv_load(rK, 240 + j + D, f'k{240+j+D}', False, vKO)
        if j < VPRE and (j + D >= 16 or True):
            pass
        k_reduce(j)

        vn = j - (16 - VPRE)
        if vn >= 0: kv_load(rV, vn, f'v{vn}', False, vKO)
    assert VPRE >= D
    stamp('kend')
    wave_reduce('v_max_f32', vMAX, sF0)
    a(f's_mov_b32 s{sT1}, {LOG2E:#x}')
    for k in range(16):
        a(f'v_subrev_f32 v{vS+k}, s{sF0}, v{vS+k}')
        a(f'v_mul_f32 v{vS+k}, s{sT1}, v{vS+k}')
    for k in range(16):
        a(f'v_exp_f32 v{vS+k}, v{vS+k}')
    a(f'v_add_f32 v{vU0}, v{vS}, v{vS+1}')
    a(f'v_add_f32 v{vU1}, v{vS+2}, v{vS+3}')
    for k in range(4, 16, 2):
        a(f'v_add_f32 v{vU0}, v{vU0}, v{vS+k}')
        a(f'v_add_f32 v{vU1}, v{vU1}, v{vS+k+1}')
    a(f'v_add_f32 v{vU0}, v{vU0}, v{vU1}')
    wave_reduce('v_add_f32', vU0, sF1)
    a(f'v_mov_b32 v{vT20}, s{sF0}')
    a(f'v_mov_b32 v{vT21}, s{sF1}')
    a(f's_lshl_b32 s{sT0}, s{sWAVE}, 3'); a(f's_add_u32 s{sT0}, s{sT0}, {L_ML}')
    a(f'v_mov_b32 v{vU0}, s{sT0}')
    a(f'ds_write_b64 v{vU0}, {V2(vT20)}')
    a(f'v_mov_b32 v{vU1}, {L_ML}')
    a('s_waitcnt lgkmcnt(0)')
    a('s_barrier')
    a(f'ds_read_b128 {V4(vAP)}, v{vU1}')
    a(f'ds_read_b128 {V4(vD)}, v{vU1} offset:16')
    a(f's_mul_i32 s{sT0}, s{sWAVE}, 36864')
    a(f'v_lshlrev_b32 v{vU0}, 4, v{vLANE}')
    a(f'v_add_u32 v{vU0}, s{sT0}, v{vU0}')
    a('s_waitcnt lgkmcnt(0)')
    for k in range(36):
        a(f'ds_read_b128 {V4(vW+4*k)}, v{vU0} offset:{1024*k}')
    vGM = vT30
    a(f'v_max3_f32 v{vGM}, v{vAP}, v{vAP+2}, v{vD}')
    a(f'v_max_f32 v{vGM}, v{vGM}, v{vD+2}')
    for r in (vAP, vAP + 2, vD, vD + 2, vT20):
        a(f'v_sub_f32 v{r}, v{r}, v{vGM}')
        a(f'v_mul_f32 v{r}, s{sT1}, v{r}')
    for r in (vAP, vAP + 2, vD, vD + 2, vT20):
        a(f'v_exp_f32 v{r}, v{r}')
    a(f'v_mul_f32 v{vT31}, v{vAP}, v{vAP+1}')
    a(f'v_fmac_f32 v{vT31}, v{vAP+2}, v{vAP+3}')
    a(f'v_fmac_f32 v{vT31}, v{vD}, v{vD+1}')
    a(f'v_fmac_f32 v{vT31}, v{vD+2}, v{vD+3}')
    a(f'v_rcp_f32 v{vT31}, v{vT31}')
    a(f'v_mul_f32 v{vT20}, v{vT20}, v{vT31}')
    for k in range(16):
        a(f'v_mul_f32 v{vS+k}, v{vS+k}, v{vT20}')
        a(f'v_cvt_pk_bf16_f32 v{vS+k}, v{vS+k}, v{vS+k}')
    for r in range(4): a(f'v_mov_b32 v{vD+r}, 0')
    stamp('vstart')
    def v_prep(j):
        for r in range(4):
            a(f'v_and_b32_dpp v{vAP+r}, v{vS}, v{vM+r} row_newbcast:{bitrev4(j)} row_mask:0xf bank_mask:0xf')
    def v_consume(j):
        a(f'v_mfma_f32_16x16x32_bf16 {V4(vD)}, {V4(vAP)}, {V4(vRING+4*j)}, {V4(vD)}')
    def v_rot():
        for k in range(15): a(f'v_mov_b32 v{vS+k}, v{vS+k+1}')
    issued = VPRE
    for j in range(16):
        v_prep(j)
        a.wait_vm(f'v{j}')
        v_consume(j)
        while issued <= j + D:
            kv_load(rV, issued, f'v{issued}', False, vKO); issued += 1
    v_rot()
    assert a.vm == [f'v{n}' for n in range(16, 16 + D)], a.vm
    a(f's_mov_b32 s{sBASE}, {ITER_BYTES}')
    a(f's_mov_b32 s{sCNT}, 14')
    a.label('L_vloop')
    for j in range(16):
        v_prep(j)
        a.wait_vm(f'v{16+j}')
        v_consume(j)
        kv_load(rV, j + D, f'v{16+j+D}', True, vKO)
    v_rot()
    a(f's_add_u32 s{sBASE}, s{sBASE}, {ITER_BYTES}')
    a(f's_sub_u32 s{sCNT}, s{sCNT}, 1'); a(f's_cmp_lg_u32 s{sCNT}, 0'); a('s_cbranch_scc1 L_vloop')
    a.vm = [f'v{n}' for n in range(240, 240 + D)]
    vOA = vPE0; vSA = vPE1; vRA = vPO
    a(f'v_lshrrev_b32 v{vOA}, 3, v{vI}')
    a(f'v_lshlrev_b32 v{vOA}, 6, v{vOA}')
    a(f'v_lshl_add_u32 v{vOA}, v{vG}, 4, v{vOA}')
    a(f's_lshl_b32 s{sT0}, s{sWAVE}, 7'); a(f's_add_u32 s{sT0}, s{sT0}, {L_QP}')
    a(f'v_add_u32 v{vOA}, s{sT0}, v{vOA}')
    a(f'v_lshrrev_b32 v{vSA}, 1, v{vG}')
    a(f's_lshl_b32 s{sT0}, s{sWAVE}, 1')
    a(f'v_add_u32 v{vSA}, s{sT0}, v{vSA}')
    a(f'v_mul_u32_u24 v{vSA}, 2304, v{vSA}')
    a(f'v_and_b32 v{vU0}, 7, v{vI}')
    a(f'v_lshl_add_u32 v{vSA}, v{vU0}, 5, v{vSA}')
    a(f'v_and_b32 v{vU0}, 1, v{vG}')
    a(f'v_lshl_add_u32 v{vSA}, v{vU0}, 4, v{vSA}')
    a(f's_lshl_b32 s{sT0}, s{sWAVE}, 8')
    a(f'v_lshlrev_b32 v{vRA}, 2, v{vLANE}')
    a(f'v_add_u32 v{vRA}, s{sT0}, v{vRA}')
    srd(rWS, sWS, WS_SIZE)
    for j in range(16):
        v_prep(j)
        a.wait_vm(f'v{240+j}')
        v_consume(j)
        if j + D < 16: kv_load(rV, 240 + j + D, f'v{240+j+D}', False, vKO)
    stamp('vend')
    a(f'ds_write_b128 v{vLA}, {V4(vD)}')
    a('s_waitcnt lgkmcnt(0)')
    a('s_barrier')
    vO = vRING
    for w in range(4):
        a(f'ds_read_b128 {V4(vO+4*w)}, v{vOA} offset:{512*w}')
    a('s_waitcnt lgkmcnt(0)')
    for k in range(4):
        a(f'v_add_f32 v{vO+k}, v{vO+k}, v{vO+4+k}')
        a(f'v_add_f32 v{vO+8+k}, v{vO+8+k}, v{vO+12+k}')
    for k in range(4):
        a(f'v_add_f32 v{vO+k}, v{vO+k}, v{vO+8+k}')
    for k in range(4):
        a(f'v_cvt_pk_bf16_f32 v{vO+k}, v{vO+k}, v{vO+k}')
    vA2 = vS
    vDT = vRING + 16
    for rho in range(4):
        for r in range(4):
            a(f'v_and_b32 v{vA2+4*rho+r}, v{vO+rho}, v{vM+r}')
    for rho in range(4):
        for t in range(9):
            a(f'v_mfma_f32_16x16x32_bf16 {V4(vDT+4*t)}, {V4(vA2+4*rho)}, {V4(vW+4*(rho*9+t))}, ' + (V4(vDT+4*t) if rho else '0'))
    a(f's_mov_b32 exec_lo, 0x00ff00ff'); a(f's_mov_b32 exec_hi, 0xff00ff00')
    for t in range(9):
        a(f'ds_write_b128 v{vSA}, {V4(vDT+4*t)} offset:{256*t}')
    a('s_mov_b64 exec, -1')
    a('s_waitcnt lgkmcnt(0)')
    a('s_barrier')
    vR = vW
    def sp_tile(base, toff):
        for k in range(8):
            a(f'ds_read_b32 v{base+k}, v{vRA} offset:{2304*k + toff}')
    def sp_sum(base):
        for k in range(4): a(f'v_add_f32 v{base+k}, v{base+k}, v{base+4+k}')
        a(f'v_add_f32 v{base}, v{base}, v{base+1}'); a(f'v_add_f32 v{base+2}, v{base+2}, v{base+3}')
        a(f'v_add_f32 v{base}, v{base}, v{base+2}')
    sp_tile(vR, 0); sp_tile(vR + 8, 1024)
    a(f's_mul_i32 s{sOFF}, s{sB}, 2304')
    a(f's_cmp_lg_u32 s{sWAVE}, 0'); a('s_cbranch_scc1 L_no9')
    sp_tile(vR + 16, 2048)
    a('s_waitcnt lgkmcnt(0)')
    sp_sum(vR + 16)
    a(f'buffer_atomic_add_f32 v{vR+16}, v{vRA}, {S(rWS)}, s{sOFF} offen offset:2048 sc1')
    a.label('L_no9')
    a('s_waitcnt lgkmcnt(0)')
    sp_sum(vR); sp_sum(vR + 8)
    a(f'buffer_atomic_add_f32 v{vR}, v{vRA}, {S(rWS)}, s{sOFF} offen sc1')
    a(f'buffer_atomic_add_f32 v{vR+8}, v{vRA}, {S(rWS)}, s{sOFF} offen offset:1024 sc1')
    a(f's_lshl_b32 s{sOFF}, s{sB}, 8'); a(f's_add_u32 s{sOFF}, s{sOFF}, {WS_CNT}')
    a(f'v_mov_b32 v{vU0}, 1'); a(f'v_mov_b32 v{vU1}, 0')
    a('s_mov_b64 exec, 1')
    a('s_waitcnt vmcnt(0)')
    a(f'buffer_atomic_add v{vU0}, v{vU1}, {S(rWS)}, s{sOFF} offen sc0 sc1')
    a('s_waitcnt vmcnt(0)')
    a(f'v_readfirstlane_b32 s{sT0}, v{vU0}')
    a('s_mov_b64 exec, -1')
    if stamps:
        stamp('cnt')
        a(f's_cmp_lg_u32 s{sWAVE}, {stamp_wave}'); a('s_cbranch_scc1 L_nost')
        stamp_store(0, 'a')
        a.label('L_nost')
    a(f's_cmp_lg_u32 s{sT0}, 128'); a('s_cbranch_scc1 L_end')
    a(f's_mov_b64 s[{sMASK}:{sMASK+1}], 0')
    a.label('L_final')
    a.vm = []
    a(f's_mul_i32 s{sT1}, s{sB}, 1152')
    srd(rX, sX, 1152, f's{sT1}')
    srd(rOUT, sOUT, 1152, f's{sT1}')
    srd(rWS, sWS, WS_SIZE)
    fA, fG, fX, f8, f4 = 8, 20, 26, 4, 5
    a(f'v_lshlrev_b32 v{f8}, 3, v{vLANE}'); a(f'v_lshlrev_b32 v{f4}, 2, v{vLANE}')
    a(f's_mul_i32 s{sOFF}, s{sB}, 2304')
    a(f's_add_u32 s{sT1}, s{sT1}, {WS_G}')
    for t in range(5):
        a(f'buffer_load_dwordx2 {V2(fA+2*t)}, v{f8}, {S(rWS)}, s{sOFF} offen offset:{512*t} sc1')
    for t in range(5):
        a(f'buffer_load_dword v{fG+t}, v{f4}, {S(rWS)}, s{sT1} offen offset:{256*t} sc1')
    for t in range(5):
        a(f'buffer_load_dword v{fX+t}, v{f4}, {S(rX)}, 0 offen offset:{256*t}')
    a('s_waitcnt vmcnt(0)')
    for t in range(5):
        s0, s1, t0, t1 = fA + 2 * t, fA + 2 * t + 1, 32, 33
        a(f'v_cvt_pk_bf16_f32 v{s1}, v{s0}, v{s1}')
        a(f'v_lshlrev_b32 v{s0}, 16, v{s1}'); a(f'v_and_b32 v{s1}, 0xffff0000, v{s1}')
        a(f'v_lshlrev_b32 v{t0}, 16, v{fG+t}'); a(f'v_and_b32 v{t1}, 0xffff0000, v{fG+t}')
        a(f'v_mul_f32 v{s0}, v{s0}, v{t0}'); a(f'v_mul_f32 v{s1}, v{s1}, v{t1}')
        a(f'v_cvt_pk_bf16_f32 v{s1}, v{s0}, v{s1}')
        a(f'v_lshlrev_b32 v{s0}, 16, v{s1}'); a(f'v_and_b32 v{s1}, 0xffff0000, v{s1}')
        a(f'v_lshlrev_b32 v{t0}, 16, v{fX+t}'); a(f'v_and_b32 v{t1}, 0xffff0000, v{fX+t}')
        a(f'v_add_f32 v{s0}, v{s0}, v{t0}'); a(f'v_add_f32 v{s1}, v{s1}, v{t1}')
        a(f'v_cvt_pk_bf16_f32 v{s0}, v{s0}, v{s1}')
        a(f'buffer_store_dword v{s0}, v{f4}, {S(rOUT)}, 0 offen offset:{256*t}')
    a.label('L_final_next')
    a(f's_cmp_eq_u32 s{sMASK}, 0'); a('s_cbranch_scc1 L_end')
    a(f's_ff1_i32_b32 s{sB}, s{sMASK}')
    a(f's_bitset0_b32 s{sMASK}, s{sB}')
    a('s_branch L_final')

    a.label('L_helper')
    a.vm = []
    hRING, hX, hACC, hT = 12, 172, 208, 240
    hAD = 4
    hV0, hV1, hV2, hV3, hV4, hV5 = 6, 7, 8, 9, 10, 11
    a(f's_and_b32 s{sT0}, s2, 7'); a(f's_mul_i32 s{sT0}, s{sT0}, 18')
    a(f's_lshr_b32 s{sT1}, s2, 3'); a(f's_add_u32 s{sTILE}, s{sT0}, s{sT1}')
    a(f's_mov_b32 s{sSEL0}, 0x05040100'); a(f's_mov_b32 s{sSEL1}, 0x07060302')
    a(f's_mov_b32 s{sC0}, 9216'); a(f's_mov_b32 s{sC0+1}, 0')
    a(f's_mov_b32 s{sC1}, {57*9216}'); a(f's_mov_b32 s{sC1+1}, 0')
    a(f'v_and_b32 v{hV0}, 7, v{vI}'); a(f'v_mul_u32_u24 v{hV0}, 1152, v{hV0}')
    a(f'v_lshrrev_b32 v{hV1}, 3, v{vI}')
    a(f'v_lshl_add_u32 v{hV0}, v{hV1}, 6, v{hV0}')
    a(f'v_lshl_add_u32 v{hV0}, v{vG}, 4, v{hV0}')
    a(f'v_bfe_u32 v{hV1}, v{vI}, 2, 1'); a(f'v_lshlrev_b32 v{hV1}, 2, v{hV1}')
    a(f'v_add_u32 v{hV1}, v{hV1}, v{vG}')
    a(f'v_mul_u32_u24 v{hV1}, {8*9216}, v{hV1}')
    a(f'v_and_b32 v{hV2}, 3, v{vI}')
    a(f'v_lshl_add_u32 v{hV1}, v{hV2}, 4, v{hV1}')
    a(f's_lshl_b32 s{sT0}, s{sTILE}, 6')
    a(f'v_add_u32 v{hV1}, s{sT0}, v{hV1}')
    a(f'v_mov_b32 v{hV2}, 1'); a(f'v_mov_b32 v{hV3}, 0')
    a('s_waitcnt lgkmcnt(0)')
    srd(rDBG, sDBG, 256)
    srd(rWS, sWS, WS_SIZE)
    a('s_mov_b64 exec, 1')
    a(f'buffer_atomic_add v{hV2}, v{hV3}, {S(rDBG)}, 0 offen sc0 sc1', 'ticket')
    a('s_mov_b64 exec, -1')
    a('s_cmp_ge_u32 s2, 144'); a('s_cbranch_scc1 L_h_noffn')
    srd(rX, sX, 9216)
    for J in range(9):
        a(f'buffer_load_dwordx4 {V4(hX+4*J)}, v{hV0}, {S(rX)}, 0 offen offset:{128*J}', f'x{J}')
    a(f'v_cmp_lt_u32 vcc, 7, v{vI}')
    a(f'v_mov_b32 v{hAD}, s{sW1}'); a(f'v_mov_b32 v{hV4}, s{sW3}')
    a(f'v_cndmask_b32 v{hAD}, v{hAD}, v{hV4}, vcc')
    a(f'v_mov_b32 v{hAD+1}, s{sW1+1}'); a(f'v_mov_b32 v{hV4}, s{sW3+1}')
    a(f'v_cndmask_b32 v{hAD+1}, v{hAD+1}, v{hV4}, vcc')
    a(f'v_add_co_u32 v{hAD}, vcc, v{hAD}, v{hV1}')
    a(f'v_addc_co_u32 v{hAD+1}, vcc, 0, v{hAD+1}, vcc')
    srd(rW, sW2, 4608 * 1152)
    a(f's_mul_i32 s{sT0}, s{sTILE}, {32*1152}')
    a(f'v_mul_u32_u24 v{hV5}, {8*1152}, v{vG}')
    a(f'v_lshl_add_u32 v{hV5}, v{vI}, 4, v{hV5}')
    a(f'v_add_u32 v{hV5}, s{sT0}, v{hV5}')
    def h_issue(gi):
        base = hRING + 32 * (gi % 5)
        for r in range(8):
            if gi < 9:
                a(f'global_load_dwordx4 {V4(base+4*r)}, {V2(hAD)}, off{fl(w13_fl)}', f'g{gi}_{r}')
                if not (gi == 8 and r == 7):
                    c = sC0 if r < 7 else sC1
                    a(f'v_lshl_add_u64 {V2(hAD)}, {V2(hAD)}, 0, s[{c}:{c+1}]')
            else:
                t = gi - 9
                a(f's_mov_b32 s{sOFF}, {r*1152}')
                a(f'buffer_load_dwordx4 {V4(base+4*r)}, v{hV5}, {S(rW)}, s{sOFF} offen offset:{256*t}{fl(w2_fl)}', f'g{gi}_{r}')
    if h_late: a('s_barrier')
    for gi in range(5): h_issue(gi)
    def h_ln():
        global vMEAN_, vSD_, vRC_
        t0, t1, acc, acc2 = hT, hT + 1, hT + 2, hT + 3
        a.wait_vm('x8')
        for k in range(36):
            a(f'v_lshlrev_b32 v{t0}, 16, v{hX+k}'); a(f'v_and_b32 v{t1}, 0xffff0000, v{hX+k}')
            if k == 0:
                a(f'v_mov_b32 v{acc}, v{t0}'); a(f'v_mov_b32 v{acc2}, v{t1}')
            else:
                a(f'v_add_f32 v{acc}, v{acc}, v{t0}'); a(f'v_add_f32 v{acc2}, v{acc2}, v{t1}')
        a(f'v_add_f32 v{acc}, v{acc}, v{acc2}')
        p16, p32 = hT + 4, hT + 5
        a(f'v_xor_b32 v{p16}, 16, v{vLANE}'); a(f'v_lshlrev_b32 v{p16}, 2, v{p16}')
        a(f'v_xor_b32 v{p32}, 32, v{vLANE}'); a(f'v_lshlrev_b32 v{p32}, 2, v{p32}')
        def red(v):
            a(f'v_add_f32_dpp v{v}, v{v}, v{v} row_ror:8 row_mask:0xf bank_mask:0xf')
            for p in (p16, p32):
                a(f'ds_bpermute_b32 v{t0}, v{p}, v{v}')
                a('s_waitcnt lgkmcnt(0)')
                a(f'v_add_f32 v{v}, v{v}, v{t0}')
        red(acc)
        mean, var, sd, rc = hT + 6, hT + 7, hT + 8, hT + 9
        a(f'v_mul_f32 v{mean}, {INV576:#x}, v{acc}')
        for k in range(36):
            a(f'v_lshlrev_b32 v{t0}, 16, v{hX+k}'); a(f'v_and_b32 v{t1}, 0xffff0000, v{hX+k}')
            a(f'v_sub_f32 v{t0}, v{t0}, v{mean}'); a(f'v_sub_f32 v{t1}, v{t1}, v{mean}')
            if k == 0:
                a(f'v_mul_f32 v{acc}, v{t0}, v{t0}'); a(f'v_mul_f32 v{acc2}, v{t1}, v{t1}')
            else:
                a(f'v_fmac_f32 v{acc}, v{t0}, v{t0}'); a(f'v_fmac_f32 v{acc2}, v{t1}, v{t1}')
        a(f'v_add_f32 v{acc}, v{acc}, v{acc2}')
        red(acc)
        a(f'v_mul_f32 v{var}, {INV576:#x}, v{acc}')
        ln_finish(var, mean, sd, rc)
        for k in range(36):
            x0, x1, u0, u1 = hT, hT + 1, hT + 2, hT + 3
            a(f'v_lshlrev_b32 v{x0}, 16, v{hX+k}'); a(f'v_and_b32 v{x1}, 0xffff0000, v{hX+k}')
            a(f'v_sub_f32 v{x0}, v{x0}, v{mean}'); a(f'v_sub_f32 v{x1}, v{x1}, v{mean}')
            a(f'v_cvt_pk_bf16_f32 v{x1}, v{x0}, v{x1}')
            a(f'v_lshlrev_b32 v{x0}, 16, v{x1}'); a(f'v_and_b32 v{x1}, 0xffff0000, v{x1}')
            a(f'v_mul_f32 v{u0}, v{x0}, v{rc}'); a(f'v_mul_f32 v{u1}, v{x1}, v{rc}')
            a(f'v_fma_f32 v{x0}, -v{u0}, v{sd}, v{x0}'); a(f'v_fma_f32 v{x1}, -v{u1}, v{sd}, v{x1}')
            a(f'v_fma_f32 v{x0}, v{x0}, v{rc}, v{u0}'); a(f'v_fma_f32 v{x1}, v{x1}, v{rc}, v{u1}')
            a(f'v_cvt_pk_bf16_f32 v{hX+k}, v{x0}, v{x1}')
    saved_vm = list(a.vm)
    if h_ln_first:
        h_ln()
    if not h_late: a('s_barrier')
    a.wait_vm('ticket')
    nvm_ffn = list(a.vm)
    a('s_branch L_h_ticket')
    a.label('L_h_noffn')
    a('s_barrier')
    a('s_waitcnt vmcnt(0)')
    a.label('L_h_ticket')
    a(f'v_readfirstlane_b32 s{sT0}, v{hV2}')
    a(f's_cmp_lg_u32 s{sT0}, 0'); a('s_cbranch_scc1 L_h_nozero')
    zz = hT + 12
    for r in range(4): a(f'v_mov_b32 v{zz+r}, 0')
    a(f'v_lshlrev_b32 v{hV4}, 4, v{vLANE}')
    for k in range(WS_ZERO // 1024):
        if k % 4 == 0: a(f's_mov_b32 s{sOFF}, {k*1024}')
        a(f'buffer_store_dwordx4 {V4(zz)}, v{hV4}, {S(rWS)}, s{sOFF} offen offset:{(k%4)*1024} sc1')
        if k == 12: a('s_waitcnt vmcnt(8)')
    a('s_waitcnt vmcnt(0)')
    a(f'v_mov_b32 v{hV4}, 1')
    a('s_mov_b64 exec, 1')
    a(f'buffer_store_dword v{hV4}, v{hV3}, {S(rDBG)}, 0 offen offset:128 sc1')
    a('s_mov_b64 exec, -1')
    a('s_waitcnt vmcnt(0)')
    a.label('L_h_nozero')
    a('s_cmp_ge_u32 s2, 144'); a('s_cbranch_scc1 L_h_wo')
    a.vm = nvm_ffn
    stamp('h_go')
    if not h_ln_first:
        h_ln()
    def h_group(gi, bop, first):
        base = hRING + 32 * (gi % 5)
        a.wait_vm(f'g{gi}_7')
        for c in range(4):
            tb = hT + 8 * (c & 1)
            for rp in range(4):
                a(f'v_perm_b32 v{tb+rp}, v{base+4*(2*rp+1)+c}, v{base+4*(2*rp)+c}, s{sSEL0}')
                a(f'v_perm_b32 v{tb+4+rp}, v{base+4*(2*rp+1)+c}, v{base+4*(2*rp)+c}, s{sSEL1}')
            for u in range(2):
                e = 2 * c + u
                a(f'v_mfma_f32_16x16x32_bf16 {V4(hACC+4*e)}, {V4(tb+4*u)}, {V4(bop)}, ' + ('0' if first else V4(hACC+4*e)))
    for gi in range(9):
        h_group(gi, hX + 4 * gi, gi == 0)
        h_issue(gi + 5)
    stamp('h_s1')
    a(f'v_and_b32 v{hV0}, 7, v{vI}')
    a(f'v_lshl_add_u32 v{hV1}, v{vG}, 3, v{hV0}')
    a(f'v_mul_u32_u24 v{hV1}, 144, v{hV1}')
    a(f'v_add_u32 v{hV1}, {L_X}, v{hV1}')
    a(f'v_mul_u32_u24 v{hV0}, 144, v{hV0}')
    a(f'v_lshl_add_u32 v{hV0}, v{vG}, 2, v{hV0}')
    a(f'v_add_u32 v{hV0}, {L_X}, v{hV0}')
    a('s_mov_b32 exec_lo, 0xff0000ff'); a('s_mov_b32 exec_hi, 0xff0000ff')
    for e in range(8):
        a(f'ds_write_b128 v{hV1}, {V4(hACC+4*e)} offset:{16*e}')
    a('s_mov_b64 exec, -1')
    a('s_waitcnt lgkmcnt(0)')
    rd = hX
    for ms in range(4):
        for e in range(8):
            a(f'ds_read_b32 v{rd+8*ms+e}, v{hV0} offset:{1152*ms+16*e}')
        if ms == 1: a('s_waitcnt lgkmcnt(0)')
    a('s_waitcnt lgkmcnt(0)')
    def silu(d, s, t):
        a(f'v_mul_f32 v{t}, {LOG2E ^ 0x80000000:#x}, v{s}')
        a(f'v_exp_f32 v{t}, v{t}')
        a(f'v_add_f32 v{t}, 1.0, v{t}')
        a(f'v_rcp_f32 v{t}, v{t}')
        a(f'v_mul_f32 v{d}, v{s}, v{t}')
    hH = hX + 32
    for e in range(8):
        gt, up = rd + e, rd + 16 + e
        a(f'v_add_f32 v{gt}, v{gt}, v{rd+8+e}'); a(f'v_add_f32 v{up}, v{up}, v{rd+24+e}')
        bf16r(gt, gt); bf16r(up, up)
        silu(gt, gt, hT)
        bf16r(gt, gt)
        a(f'v_mul_f32 v{gt}, v{gt}, v{up}')
    for c in range(4):
        a(f'v_cvt_pk_bf16_f32 v{hH+c}, v{rd+2*c}, v{rd+2*c+1}')
    def wait_z(lbl):
        a.label(lbl)
        a(f'buffer_load_dword v{hV4}, v{hV3}, {S(rDBG)}, 0 offen offset:128 sc1')
        a('s_waitcnt vmcnt(0)')
        a(f'v_readfirstlane_b32 s{sT0}, v{hV4}')
        a(f's_cmp_lg_u32 s{sT0}, 0'); a(f's_cbranch_scc1 {lbl}_ok')
        a('s_sleep 8'); a(f's_branch {lbl}')
        a.label(lbl + '_ok')
        a.vm = []
    wait_z('L_h_z1')
    stamp('h_z')
    a(f'v_cmp_lt_u32 s[{sMASK}:{sMASK+1}], 7, v{vI}')
    a(f'v_lshlrev_b32 v{hV0}, 2, v{vLANE}')
    for t in range(5):
        h_group(9 + t, hH, True)
        a(f's_mov_b32 s{sOFF}, {WS_ACCF + t*4096}')
        yy = hX
        for e in range(4):
            for r in range(4):
                a(f'v_cndmask_b32 v{yy+4*e+r}, v{hACC+4*e+r}, v{hACC+4*(e+4)+r}, s[{sMASK}:{sMASK+1}]')
        if t == 4: (a('s_mov_b32 exec_lo, -1'), a('s_mov_b32 exec_hi, 0'))
        for k in range(16):
            a(f'buffer_atomic_add_f32 v{yy+k}, v{hV0}, {S(rWS)}, s{sOFF} offen offset:{256*k} sc1')
        if t == 4: a('s_mov_b64 exec, -1')
        if t in (1, 3): a('s_waitcnt vmcnt(16)')
    a.label('L_h_wo')
    stamp('h_wo')
    a(f's_mul_i32 s{sT0}, s{sH}, {128*1152}')
    srd(rWO, sWO, 128 * 1152, f's{sT0}')
    a(f'v_lshrrev_b32 v{hV0}, 3, v{vI}'); a(f'v_lshlrev_b32 v{hV0}, 2, v{hV0}')
    a(f'v_add_u32 v{hV0}, v{hV0}, v{vG}')
    a(f'v_mul_u32_u24 v{hV0}, {4*1152}, v{hV0}')
    a(f'v_and_b32 v{hV1}, 7, v{vI}')
    a(f'v_lshl_add_u32 v{hV0}, v{hV1}, 4, v{hV0}')
    a(f's_mov_b32 s{sCNT}, 0'); a(f's_mov_b32 s{sBASE}, {L_WO}')
    a.label('L_h_woloop')
    a(f's_lshr_b32 s{sT0}, s{sCNT}, 2'); a(f's_lshl_b32 s{sT0}, s{sT0}, 5')
    a(f's_and_b32 s{sT1}, s{sCNT}, 3'); a(f's_add_u32 s{sT0}, s{sT0}, s{sT1}')
    a(f's_mul_i32 s{sT0}, s{sT0}, 1152')
    for t in range(9):
        a(f's_add_u32 m0, s{sBASE}, {1024*t}')
        a(f's_add_u32 s{sOFF}, s{sT0}, {128*t}')
        a(f'buffer_load_dwordx4 v{hV0}, {S(rWO)}, s{sOFF} offen{fl(wo_fl)} lds')
    a(f's_waitcnt vmcnt({wo_inflight})')
    a(f's_add_u32 s{sBASE}, s{sBASE}, 9216')
    a(f's_add_u32 s{sCNT}, s{sCNT}, 1'); a(f's_cmp_lt_u32 s{sCNT}, 16'); a('s_cbranch_scc1 L_h_woloop')
    wait_z('L_h_z2')
    if stamps:
        stamp('h_end')
        stamp_store(1, 'h')
        a(f'v_mov_b32 v{hV3}, 0')
    a('s_cmp_ge_u32 s2, 144'); a('s_cbranch_scc1 L_end')
    a(f'v_mov_b32 v{hV2}, 1')
    a(f's_mov_b32 s{sOFF}, {WS_FCNT}')
    a('s_mov_b64 exec, 1')
    a(f'buffer_atomic_add v{hV2}, v{hV3}, {S(rWS)}, s{sOFF} offen sc0 sc1')
    a('s_waitcnt vmcnt(0)')
    a(f'v_readfirstlane_b32 s{sT0}, v{hV2}')
    a('s_mov_b64 exec, -1')
    a(f's_cmp_lg_u32 s{sT0}, 143'); a('s_cbranch_scc1 L_end')
    a(f'v_lshlrev_b32 v{hV0}, 2, v{vLANE}')
    for t in range(5):
        a(f's_mov_b32 s{sOFF}, {WS_ACCF + t*4096}')
        for k in range(16):
            a(f'buffer_load_dword v{hRING+16*t+k}, v{hV0}, {S(rWS)}, s{sOFF} offen offset:{256*k} sc1')
        if t == 2: a('s_waitcnt vmcnt(16)')
    a(f'v_and_b32 v{hV1}, 7, v{vI}'); a(f'v_mul_u32_u24 v{hV1}, 1152, v{hV1}')
    a(f'v_lshl_add_u32 v{hV1}, v{vG}, 6, v{hV1}')
    a(f'v_lshrrev_b32 v{hV4}, 3, v{vI}')
    a(f'v_lshl_add_u32 v{hV1}, v{hV4}, 3, v{hV1}')
    a(f'v_add_u32 v{hV1}, {L_G}, v{hV1}')
    a('s_waitcnt vmcnt(0)')
    for t in range(5):
        if t == 4: (a('s_mov_b32 exec_lo, -1'), a('s_mov_b32 exec_hi, 0'))
        for e in range(4):
            for r in range(4):
                v = hRING + 16 * t + 4 * e + r
                bf16r(v, v)
                silu(v, v, hT)
                a(f'v_cvt_pk_bf16_f32 v{v}, v{v}, v{v}')
                a(f'ds_write_b16 v{hV1}, v{v} offset:{(128*t + 8*r + e)*2}')
        a('s_waitcnt lgkmcnt(0)')
    a('s_mov_b64 exec, -1')
    a(f'v_lshlrev_b32 v{hV0}, 4, v{vLANE}')
    a(f'v_add_u32 v{hV1}, {L_G}, v{hV0}')
    for k in range(9):
        a(f'ds_read_b128 {V4(hRING+4*k)}, v{hV1} offset:{1024*k}')
    a('s_waitcnt lgkmcnt(0)')
    for k in range(9):
        if k % 4 == 0: a(f's_mov_b32 s{sOFF}, {WS_G + k*1024}')
        a(f'buffer_store_dwordx4 {V4(hRING+4*k)}, v{hV0}, {S(rWS)}, s{sOFF} offen offset:{(k%4)*1024} sc1')
    a(f'v_mov_b32 v{hV2}, 1')
    a(f'v_lshlrev_b32 v{hV4}, 8, v{vLANE}')
    a(f's_mov_b32 s{sOFF}, {WS_CNT}')
    a('s_waitcnt vmcnt(0)')
    a('s_mov_b64 exec, 0xff')
    a(f'buffer_atomic_add v{hV2}, v{hV4}, {S(rWS)}, s{sOFF} offen sc0 sc1')
    a('s_waitcnt vmcnt(0)')
    a(f'v_mov_b32 v{hV4}, 128')
    a(f'v_cmp_eq_u32 s[{sMASK}:{sMASK+1}], v{hV2}, v{hV4}')
    a('s_mov_b64 exec, -1')
    a('s_branch L_final_next')
    a.label('L_end')
    a('s_endpgm')
    a.raw('.section .rodata,"a"'); a.raw('.p2align 6'); a.raw(f'.amdhsa_kernel {KNAME}')
    a.raw('  .amdhsa_next_free_vgpr 256'); a.raw('  .amdhsa_next_free_sgpr 102'); a.raw('  .amdhsa_accum_offset 256')
    a.raw('  .amdhsa_group_segment_fixed_size 0'); a.raw('  .amdhsa_kernarg_size 96'); a.raw('  .amdhsa_user_sgpr_count 2')
    a.raw('  .amdhsa_user_sgpr_kernarg_segment_ptr 1'); a.raw('  .amdhsa_system_sgpr_workgroup_id_x 1')
    a.raw('  .amdhsa_float_denorm_mode_32 3')
    a.raw('.end_amdhsa_kernel')
    return a.text()

if __name__ == '__main__':
    ap = argparse.ArgumentParser()
    ap.add_argument('out')
    ap.add_argument('--opt', action='append', default=[])
    args = ap.parse_args()
    kw = {}
    for o in args.opt:
        k, v = o.split('=', 1)
        try: v = eval(v)
        except Exception: pass
        kw[k] = v
    open(args.out, 'w').write(gen(**kw))
```
